```python
import torch

def _softmax(x, axis=-1):
    return torch.softmax(x, dim=axis)

def _gelu(x):
    return torch.nn.functional.gelu(x, approximate='tanh')

def _silu(x):
    return torch.nn.functional.silu(x)

def _sigmoid(x):
    return torch.sigmoid(x)

def _layernorm(x, axis=-1, eps=1e-05):
    m = x.mean(dim=axis, keepdim=True)
    v = x.var(dim=axis, keepdim=True, unbiased=False)
    return (x - m) / torch.sqrt(v + eps)

def _scatter_add(tgt, idx, src, axis=0):
    return tgt.clone().index_add_(axis, idx, src)

def _segment_sum(src, seg, n):
    out = torch.zeros((n,) + src.shape[1:], dtype=src.dtype)
    return out.index_add_(0, seg, src)

def _pad(x, pw):
    flat = tuple((v for pair in reversed(pw) for v in pair))
    return torch.nn.functional.pad(x, flat)
kernel_name = 'adaLN_cond__mha_block_cached__moe_arch_mod__prompt'

def setup_inputs():

    _w = lambda a: (lambda t: t.to(torch.bfloat16) if t.is_floating_point() else t)(torch.as_tensor(a))

    def _A_setup():
        B, Sq, D = (1, 2048, 512)
        H, Sk, Dh = (32, 2048, 128)
        return {'x': _w((lambda *s: torch.randn(*s, dtype=torch.bfloat16) * 0.1)(B, Sq, D)), 'k_cache': _w((lambda *s: torch.randn(*s, dtype=torch.bfloat16) * 0.8)(B, H, Sk, Dh)), 'v_cache': _w((lambda *s: torch.randn(*s, dtype=torch.bfloat16) * 3.2)(B, H, Sk, Dh)), 'wq': _w((lambda *s: torch.randn(*s, dtype=torch.bfloat16) * 0.8)(D, H * Dh) * D ** (-0.5)), 'wo': _w((lambda *s: torch.randn(*s, dtype=torch.bfloat16) * 3.2)(H * Dh, D) * (H * Dh) ** (-0.5))}
    _A_in = _A_setup()

    def _B_setup():
        B, S, D, F, C = (1, 2048, 512, 1792, 1)
        return {'x': _w((lambda *s: torch.randn(*s, dtype=torch.bfloat16) * 0.1)(B, S, D)), 'w_r': _w((lambda *s: torch.randn(*s, dtype=torch.bfloat16) * 3.2)(D)), 'w_gate': _w((lambda *s: torch.randn(*s, dtype=torch.bfloat16) * 3.2)(D, F)), 'w_up': _w((lambda *s: torch.randn(*s, dtype=torch.bfloat16) * 3.2)(D, F)), 'w_down': _w((lambda *s: torch.randn(*s, dtype=torch.bfloat16) * 3.2)(F, D))}
    _B_in = _B_setup()
    return {'A_x': _A_in['x'], 'A_k_cache': _A_in['k_cache'], 'A_v_cache': _A_in['v_cache'], 'A_wq': _A_in['wq'], 'A_wo': _A_in['wo'], 'B_x': _B_in['x'], 'B_w_r': _B_in['w_r'], 'B_w_gate': _B_in['w_gate'], 'B_w_up': _B_in['w_up'], 'B_w_down': _B_in['w_down'], 'c': _w((lambda *s: torch.randn(*s, dtype=torch.bfloat16) * 0.2)(1, 512) * 8.0), 'w_mod': _w((lambda *s: torch.randn(*s, dtype=torch.bfloat16) * 0.2)(512, 6 * 512) * 512 ** (-0.5) * 8.0)}

def reference(A_x, A_k_cache, A_v_cache, A_wq, A_wo, B_x, B_w_r, B_w_gate, B_w_up, B_w_down, c, w_mod):

    def _A_ref(x, k_cache, v_cache, wq, wo):
        B, Sq, D = x.shape
        H, Dh = (32, 128)
        q = (lambda x, *d: x.permute(*d))((x @ wq).reshape(B, Sq, H, Dh), 0, 2, 1, 3)
        scores = torch.einsum('bhqd,bhkd->bhqk', q, k_cache) * Dh ** (-0.5)
        p = _softmax(scores, axis=-1)
        o = torch.einsum('bhqk,bhkd->bhqd', p, v_cache)
        return (lambda x, *d: x.permute(*d))(o, 0, 2, 1, 3).reshape(B, Sq, H * Dh) @ wo

    def _B_ref(x, w_r, w_gate, w_up, w_down):
        B, S, D = x.shape
        C = 1
        r = x @ w_r
        idx = torch.argsort(-r, axis=-1)[:, :C]
        idx_e = (lambda x, n, axis: torch.repeat_interleave(x, n, dim=axis))(idx.reshape(B, C, 1), D, axis=2)
        x_sel = (lambda x, i, axis: torch.take_along_dim(x, i, dim=axis))(x, idx_e, axis=1)
        g = _silu(x_sel @ w_gate)
        u = x_sel @ w_up
        y = g * u @ w_down
        r_sel = _sigmoid((lambda x, i, axis: torch.take_along_dim(x, i, dim=axis))(r, idx, axis=1))
        y = y * r_sel.reshape(B, C, 1)
        b_off = (torch.arange(B) * S).reshape(B, 1)
        flat_idx = (idx + b_off).reshape(B * C)
        zero = (x * 0.0).reshape(B * S, D)
        upd = _scatter_add(zero, flat_idx, y.reshape(B * C, D), axis=0)
        return x + upd.reshape(B, S, D)
    x = A_x
    mod = (_silu(c) @ w_mod).reshape(c.shape[0], 6, 1, -1)
    sa, ca, ga, sb, cb, gb = (mod[:, 0].clone(), mod[:, 1].clone(), mod[:, 2].clone(), mod[:, 3].clone(), mod[:, 4].clone(), mod[:, 5].clone())
    h = _layernorm(x, axis=-1) * (1 + ca) + sa
    x = x + ga * _A_ref(h, A_k_cache, A_v_cache, A_wq, A_wo)
    h = _layernorm(x, axis=-1) * (1 + cb) + sb
    x = x + gb * _B_ref(h, B_w_r, B_w_gate, B_w_up, B_w_down)
    return x
```

```python
import re

TRANS = ("v_exp_f32", "v_log_f32", "v_rcp_f32", "v_rsq_f32", "v_sqrt_f32", "v_sin_f32", "v_cos_f32")
REG_RE = re.compile(r"^(-|abs\(|\|)*([vas])(\d+)\)?\|?$")
RNG_RE = re.compile(r"^(-|abs\(|\|)*([vas])\[(\d+):(\d+)\]\)?\|?$")

def regs_of(tok):
    tok = tok.strip()
    m = REG_RE.match(tok)
    if m:
        return [(m.group(2), int(m.group(3)))]
    m = RNG_RE.match(tok)
    if m:
        return [(m.group(2), i) for i in range(int(m.group(3)), int(m.group(4)) + 1)]
    if tok == "vcc": return [("s", 106), ("s", 107)]
    if tok == "vcc_lo": return [("s", 106)]
    if tok == "vcc_hi": return [("s", 107)]
    if tok == "exec": return [("s", 126), ("s", 127)]
    if tok == "m0": return [("s", 124)]
    return []

def split_ops(s):
    out, depth, cur = [], 0, ""
    for ch in s:
        if ch in "[(": depth += 1
        if ch in "])": depth -= 1
        if ch == "," and depth == 0:
            out.append(cur.strip()); cur = ""
        else:
            cur += ch
    if cur.strip(): out.append(cur.strip())
    return out

class Inst:
    __slots__ = ("text", "op", "kind", "w", "r", "a", "b", "c", "passes", "nop", "dpp", "trans", "lds", "wide",
                 "vm", "lg", "tag", "perm", "rdlane", "sdwa", "wait_vm", "wait_lg", "data", "fixed")
    def __init__(self, text, tag=None):
        self.text = text
        self.tag = tag
        self.fixed = False
        t = text.split(";")[0].strip()
        self.op = t.split()[0] if t else ""
        rest = t[len(self.op):].strip()
        ops = split_ops(rest)
        mods = ""
        if ops:
            last = ops[-1].split()
            ops[-1] = last[0]
            mods = " ".join(last[1:])
        op = self.op
        self.w, self.r = [], []
        self.a = self.b = self.c = []
        self.passes = 0; self.nop = 1
        self.dpp = ("row_" in mods or "quad_perm" in mods or "_dpp" in op)
        self.sdwa = "_sdwa" in op
        self.trans = any(op.startswith(x) for x in TRANS)
        self.lds = False; self.wide = False; self.vm = False; self.lg = None
        self.perm = False; self.rdlane = False
        self.wait_vm = None; self.wait_lg = None
        self.data = []
        R = lambda i: regs_of(ops[i]) if i < len(ops) else []
        if op.endswith(":") or op.startswith(".") or op == "":
            self.kind = "label"; self.nop = 0
        elif op.startswith("v_mfma"):
            self.kind = "mfma"
            self.w = R(0); self.a = R(1); self.b = R(2); self.c = R(3)
            self.r = self.a + self.b + self.c
            self.passes = 8 if "32x32x16" in op else 4
        elif op.startswith("v_"):
            self.kind = "valu"
            if op.startswith("v_cmp"):
                self.w = R(0); self.r = R(1) + R(2)
                if op.startswith("v_cmpx"): self.w += regs_of("exec")
            elif "permlane" in op and "swap" in op:
                self.w = R(0) + R(1); self.r = R(0) + R(1); self.perm = True
            elif op.startswith("v_readfirstlane") or op.startswith("v_readlane"):
                self.w = R(0); self.r = R(1) + R(2); self.rdlane = True
            elif "_co_" in op:
                self.w = R(0) + R(1); self.r = sum((R(i) for i in range(2, len(ops))), [])
            elif op.startswith("v_cndmask"):
                self.w = R(0); self.r = sum((R(i) for i in range(1, len(ops))), [])
                if len(ops) == 3: self.r += regs_of("vcc")
            elif op == "v_nop":
                pass
            else:
                self.w = R(0); self.r = sum((R(i) for i in range(1, len(ops))), [])
                if op.startswith("v_fmac") or op.startswith("v_dot2c") or op.startswith("v_writelane") or self.dpp or (self.sdwa and "UNUSED_PRESERVE" in mods):
                    self.r += R(0)
        elif op.startswith("ds_"):
            self.kind = "ds"; self.lg = "ds"
            if op.startswith("ds_read") or op.startswith("ds_bpermute") or op.startswith("ds_permute") or op.startswith("ds_swizzle") or "_rtn" in op:
                self.w = R(0); self.r = sum((R(i) for i in range(1, len(ops))), [])
            else:
                self.r = sum((R(i) for i in range(len(ops))), [])
        elif op.startswith("buffer_") or op.startswith("global_"):
            self.kind = "vmem"; self.vm = True
            allm = (" " + mods + " ")
            if op in ("buffer_wbl2", "buffer_inv"):
                pass
            elif " lds " in allm or "_lds_" in op:
                self.lds = True
                self.r = sum((R(i) for i in range(len(ops))), []) + regs_of("m0")
            elif "load" in op:
                self.w = R(0); self.r = sum((R(i) for i in range(1, len(ops))), [])
            elif "atomic" in op and " sc0 " in allm:
                self.w = R(0); self.r = sum((R(i) for i in range(len(ops))), [])
            else:
                self.r = sum((R(i) for i in range(len(ops))), [])
                if "x4" in op or "x3" in op:
                    self.wide = True
                    self.data = R(0) if op.startswith("buffer_") else R(1)
        elif op.startswith("s_load") or op.startswith("s_buffer_load") or op in ("s_memtime", "s_memrealtime") or op.startswith("s_atomic"):
            self.kind = "smem"; self.lg = "smem"
            self.w = R(0); self.r = sum((R(i) for i in range(1, len(ops))), [])
        elif op == "s_nop":
            self.kind = "salu"; self.nop = int(ops[0], 0) + 1
        elif op == "s_waitcnt":
            self.kind = "wait"
            m = re.search(r"vmcnt\((\d+)\)", t); self.wait_vm = int(m.group(1)) if m else None
            m = re.search(r"lgkmcnt\((\d+)\)", t); self.wait_lg = int(m.group(1)) if m else None
        elif op.startswith("s_"):
            self.kind = "salu"
            if op.startswith("s_cmp") or op.startswith("s_bitcmp"):
                self.r = R(0) + R(1)
            elif op.startswith(("s_branch", "s_cbranch", "s_barrier", "s_setprio", "s_endpgm", "s_sleep")):
                pass
            else:
                self.w = R(0); self.r = sum((R(i) for i in range(1, len(ops))), [])
                if "saveexec" in op: self.w += regs_of("exec"); self.r += regs_of("exec")
        else:
            raise ValueError("unknown instruction: " + text)

def need_states(p, c):
    n = 0
    pw = set(p.w)
    if p.kind == "valu":
        pv = {x for x in pw if x[0] in "va"}
        ps = {x for x in pw if x[0] == "s"}
        if c.kind == "mfma" and pv & set(c.r): n = max(n, 2)
        if c.kind == "valu":
            if pv & set(c.r):
                if c.dpp or c.perm: n = max(n, 2)
                if c.rdlane: n = max(n, 1)
                if p.trans and not c.trans: n = max(n, 1)
                if p.sdwa: n = max(n, 1)
            if ps & set(c.r): n = max(n, 4 if c.rdlane or c.op.startswith("v_writelane") else 2)
            if ("s", 126) in ps and (c.dpp): n = max(n, 5)
        if c.kind == "mfma" and ("s", 126) in ps: n = max(n, 4)
        if c.kind == "vmem" and ps & set(c.r): n = max(n, 5)
        if p.trans and c.kind in ("vmem", "ds") and pv & set(c.r): n = max(n, 1)
    if p.kind == "mfma":
        big = {4: 8, 8: 12}[p.passes]
        ovl = {4: 6, 8: 10}[p.passes]
        war = {4: 3, 8: 7}[p.passes]
        if c.kind == "mfma":
            if pw & set(c.a + c.b): n = max(n, big)
            if pw & set(c.c):
                if not (c.c == p.w and c.passes == p.passes): n = max(n, ovl)
            elif pw & set(c.w) and c.w != p.w: n = max(n, ovl)
        elif c.kind in ("valu", "vmem", "ds"):
            if pw & (set(c.r) | set(c.w)): n = max(n, big)
            if c.kind == "valu" and set(p.c) & set(c.w): n = max(n, war)
    if p.kind == "salu" and ("s", 124) in pw and c.kind == "vmem" and c.lds: n = max(n, 1)
    if p.kind == "vmem" and p.wide and set(p.data) & set(c.w):
        n = max(n, 2 if c.kind == "valu" else 1)
    return n

class Kern:
    def __init__(self, name):
        self.name = name
        self.ins = []
        self.loops = []
        self.fixed = False
    def __call__(self, text, tag=None):
        for ln in text.split("\n"):
            ln = ln.strip()
            if not ln or ln.startswith(";"): continue
            i = Inst(ln, tag)
            i.fixed = self.fixed
            self.ins.append(i)
    def label(self, name):
        self(name + ":")

    def _scan_hazards(self, seq, autofix):
        probs = []
        for j, c in enumerate(seq):
            if c.kind == "label": continue
            dist = 0
            for i in range(j - 1, max(-1, j - 40), -1):
                p = seq[i]
                if p.kind != "label":
                    n = need_states(p, c)
                    if n > dist:
                        probs.append((j, n - dist, p))
                dist += p.nop
                if dist >= 20: break
        return probs

    def paths(self):
        lab = {i.op[:-1]: k for k, i in enumerate(self.ins) if i.kind == "label" and i.op.endswith(":")}
        seqs = [list(range(len(self.ins)))]
        for k, i in enumerate(self.ins):
            if i.op.startswith("s_cbranch") or i.op == "s_branch":
                tgt = i.text.split()[1]
                t = lab[tgt]
                a = max(0, k - 45)
                seqs.append(list(range(a, k + 1)) + list(range(t, min(len(self.ins), t + 45))))
        return seqs

    def fix_hazards(self):
        for _ in range(50):
            changed = False
            for seq in self.paths():
                ins = [self.ins[k] for k in seq]
                probs = self._scan_hazards(ins, True)
                if probs:
                    j, miss, p = probs[0]
                    c = ins[j]
                    if c.fixed:
                        raise RuntimeError(f"[{self.name}] hazard in fixed region: '{p.text}' -> '{c.text}' short by {miss}")
                    k = seq[j]
                    self.ins.insert(k, Inst(f"s_nop {miss - 1}"))
                    changed = True
                    break
            if not changed: return
        return self.fix_hazards()

    def _sim_waits(self, seq, vmq, lgq, autofix):
        for k in seq:
            c = self.ins[k]
            if c.kind == "wait":
                if c.wait_vm is not None:
                    while len(vmq) > c.wait_vm: vmq.pop(0)
                if c.wait_lg is not None:
                    if any(x[0] == "smem" for x in lgq):
                        if c.wait_lg == 0: lgq.clear()
                    else:
                        while len(lgq) > c.wait_lg: lgq.pop(0)
                continue
            if c.kind == "label": continue
            touched = set(c.r) | set(c.w)
            needv = None; needl = None
            for idx, (kind, w) in enumerate(vmq):
                if w & touched: needv = len(vmq) - 1 - idx
            for idx, (kind, w) in enumerate(lgq):
                if w & touched:
                    needl = 0 if any(x[0] == "smem" for x in lgq) else len(lgq) - 1 - idx
            if needv is not None or needl is not None:
                s = "s_waitcnt"
                if needv is not None: s += f" vmcnt({min(needv, 63)})"
                if needl is not None: s += f" lgkmcnt({min(needl, 15)})"
                return k, s
            if c.vm: vmq.append(("vm", set(c.w)))
            if c.lg: lgq.append((c.lg, set(c.w)))
            if c.op == "s_endpgm": return None
        return None

    def fix_waits(self):
        for _ in range(2000):
            lab = {i.op[:-1]: k for k, i in enumerate(self.ins) if i.kind == "label" and i.op.endswith(":")}
            prob = None
            plist = []
            n = len(self.ins)
            def linear(frm, to): return list(range(frm, to))
            base = []
            k = 0
            seen = {}
            def walk(take):
                seq = []; k = 0; cnt = {}
                while k < n and len(seq) < 400000:
                    i = self.ins[k]; seq.append(k)
                    if i.op == "s_endpgm": break
                    if i.op == "s_branch":
                        k = lab[i.text.split()[1]];
                        cnt[('b', k)] = cnt.get(('b', k), 0) + 1
                        if cnt[('b', k)] > 3: break
                        continue
                    if i.op.startswith("s_cbranch"):
                        t = lab[i.text.split()[1]]
                        if t <= k:
                            cnt[k] = cnt.get(k, 0) + 1
                            if cnt[k] <= 1: k = t; continue
                            cnt[k] = 0
                        elif k in take:
                            k = t; continue
                    k += 1
                return seq
            fwd = [k for k, i in enumerate(self.ins) if i.op.startswith("s_cbranch") and lab[i.text.split()[1]] > k]
            takes = [set()] + [{f} for f in fwd]
            if len(fwd) <= 10:
                import itertools
                takes += [set(c) for c in itertools.combinations(fwd, 2)]
            for tk in takes:
                prob = self._sim_waits(walk(tk), [], [], True)
                if prob: break
            if not prob: return
            k, s = prob
            if self.ins[k].fixed:
                raise RuntimeError(f"[{self.name}] missing wait in fixed region before '{self.ins[k].text}' (idx {k}): need {s}")
            self.ins.insert(k, Inst(s))
        raise RuntimeError("fix_waits did not converge")

    def finish(self):
        self.fix_waits()
        self.fix_hazards()
        self.fix_waits()

    def text(self):
        out = []
        for i in self.ins:
            out.append(i.text if i.kind == "label" else "    " + i.text)
        return "\n".join(out)

    def max_regs(self):
        mx = {"v": -1, "a": -1, "s": -1}
        for i in self.ins:
            for (t, n) in list(i.w) + list(i.r):
                if t == "s" and n >= 102: continue
                mx[t] = max(mx[t], n)
        return mx

def descriptor(name, nv, na, ns):
    acc = max(4, (nv + 3) // 4 * 4)
    total = acc + na if na > 0 else nv
    return f""".amdhsa_kernel {name}
  .amdhsa_next_free_vgpr {max(total, 8)}
  .amdhsa_next_free_sgpr {max(ns, 16)}
  .amdhsa_accum_offset {acc}
  .amdhsa_group_segment_fixed_size 0
  .amdhsa_kernarg_size 120
  .amdhsa_user_sgpr_count 2
  .amdhsa_user_sgpr_kernarg_segment_ptr 1
  .amdhsa_system_sgpr_workgroup_id_x 1
.end_amdhsa_kernel"""
```

```python
import math, struct
from asmfw import *

KA = dict(x=0, k=8, v=16, wq=24, wo=32, bx=40, wr=48, wg=56, wu=64, wd=72, c=80, wmod=88, out=96, dbg=104, ws=112)

WS_MOD = 0x0000
WS_CPART = 0x3000
WS_STATS = 0x4000
WS_ACT = 0xA000
WS_SEL = 0xC000
WS_SMALL_END = 0x10000
WS_XNF = 0x100000
WS_X2 = 0x300000
WS_OF = 0x800000

QSCALE = math.log2(math.e) / math.sqrt(128.0)
LOG2E = math.log2(math.e)

def f32(x):
    return "0x%08x" % struct.unpack("<I", struct.pack("<f", x))[0]

def srd(k, d, p, off, size):
    if off == 0:
        k(f"s_mov_b32 s{d}, s{p}\ns_mov_b32 s{d+1}, s{p+1}")
    else:
        k(f"s_add_u32 s{d}, s{p}, {off}\ns_addc_u32 s{d+1}, s{p+1}, 0")
    k(f"s_mov_b32 s{d+2}, {size}\ns_mov_b32 s{d+3}, 0x20000")

def rnd_bf16(k, d, s):
    k(f"v_cvt_pk_bf16_f32 v{d}, v{s}, v{s}\nv_and_b32 v{d}, 0xffff0000, v{d}")

def unpack(k, lo, hi, s):
    k(f"v_lshlrev_b32 v{lo}, 16, v{s}\nv_and_b32 v{hi}, 0xffff0000, v{s}")

def row16_allreduce(k, op, r, t):
    for n in (8, 4, 2, 1):
        k(f"{op}_dpp v{r}, v{r}, v{r} row_ror:{n} row_mask:0xf bank_mask:0xf")

def cross_rows_allreduce(k, op, r, t):
    k(f"v_mov_b32 v{t}, v{r}")
    k(f"v_permlane16_swap_b32 v{t}, v{r}")
    k(f"{op} v{r}, v{t}, v{r}")
    k(f"v_mov_b32 v{t}, v{r}")
    k(f"v_permlane32_swap_b32 v{t}, v{r}")
    k(f"{op} v{r}, v{t}, v{r}")

WS_STAMP = 0x2000000
class Stamps:
    def __init__(self, k, on, sbase=70):
        self.k, self.on, self.n, self.sb = k, on, 0, sbase
    def mark(self, real=False):
        if not self.on: return
        k = self.k
        k("s_waitcnt lgkmcnt(0)")
        k(f"{'s_memrealtime' if real else 's_memtime'} s[{self.sb+16}:{self.sb+17}]")
        k("s_waitcnt lgkmcnt(0)")
        k(f"s_mov_b32 s{self.sb+self.n}, s{self.sb+16}")
        self.n += 1
    def dump(self, wsp, wave_s, slot, vt=0, waves=4):
        if not self.on: return
        k = self.k; b = self.sb
        k(f"s_mul_i32 s{b+16}, s2, {waves}\ns_add_u32 s{b+16}, s{b+16}, s{wave_s}\ns_lshl_b32 s{b+16}, s{b+16}, 6")
        srd(k, b + 20, wsp, WS_STAMP + slot * 0x40000, 0x40000)
        k(f"v_mov_b32 v{vt+1}, 0")
        k("s_mov_b64 exec, 1")
        for i in range(self.n):
            k(f"v_mov_b32 v{vt}, s{b+i}")
            k(f"buffer_store_dword v{vt}, v{vt+1}, s[{b+20}:{b+23}], s{b+16} offen offset:{4*i}")
        k("s_mov_b64 exec, -1")
```

```python
import sys, importlib
sys.path.insert(0, "gen")
from common import *
NAME = "adaLN_cond__mha_block_cached__moe_arch_mod__prompt"
def generate(mods, path, opts=None):
    ref = open(f"cdna_kernels/{NAME}.s.ref").read().split("\n")
    head = [l for l in ref if l.startswith(";   offset") or l.startswith("; Kernarg")]
    ks = []
    for m in mods:
        mod = importlib.import_module(m.split("#")[0])
        r = mod.build(**(opts or {}).get(m, {}))
        ks.append(r)
    out = list(head)
    for k, L in ks:
        out.append(f"; @launch kernel={k.name} grid=({L['grid']},1,1) block=({L['block']},1,1) lds={L['lds']}")
    out.append('.amdgcn_target "amdgcn-amd-amdhsa--gfx950"')
    out.append(".text")
    for k, L in ks:
        out.append(f".globl {k.name}\n.p2align 8\n.type {k.name},@function\n{k.name}:")
        out.append(k.text())
    out.append('.section .rodata,"a"')
    for k, L in ks:
        mx = k.max_regs()
        nv = L.get("nv", mx["v"] + 1)
        out.append(".p2align 6")
        out.append(descriptor(k.name, nv, mx["a"] + 1, mx["s"] + 1))
        print(k.name, "insts", len(k.ins), "v", mx["v"] + 1, "a", mx["a"] + 1, "s", mx["s"] + 1, file=sys.stderr)
    open(path, "w").write("\n".join(out) + "\n")
if __name__ == "__main__":
    mods = sys.argv[2].split(",")
    import json
    opts = json.loads(sys.argv[3]) if len(sys.argv) > 3 else None
    generate(mods, sys.argv[1], opts)
```
